```python
import torch

def _softmax(x, axis=-1):
    return torch.softmax(x, dim=axis)
def _gelu(x):
    return torch.nn.functional.gelu(x, approximate="tanh")
def _silu(x):
    return torch.nn.functional.silu(x)
def _sigmoid(x):
    return torch.sigmoid(x)
def _layernorm(x, axis=-1, eps=1e-5):
    m = x.mean(dim=axis, keepdim=True)
    v = x.var(dim=axis, keepdim=True, unbiased=False)
    return (x - m) / torch.sqrt(v + eps)
def _scatter_add(tgt, idx, src, axis=0):
    return tgt.clone().index_add_(axis, idx, src)
def _segment_sum(src, seg, n):
    out = torch.zeros((n,) + src.shape[1:], dtype=src.dtype)
    return out.index_add_(0, seg, src)
def _pad(x, pw):
    flat = tuple(v for pair in reversed(pw) for v in pair)
    return torch.nn.functional.pad(x, flat)

kernel_name = 'standalone__gqa_block_cached__near_ridge'

def setup_inputs():

    _w = (lambda a: (lambda t: t.to(torch.bfloat16) if t.is_floating_point() else t)(torch.as_tensor(a)))
    B, Sq, D = 8, 144, 512
    Hq, Hkv, Sk, Dh = 32, 32, 2048, 128
    assert Hq % Hkv == 0, (Hq, Hkv)
    return {
        "x": _w((lambda *s: torch.randn(*s, dtype=torch.bfloat16) * 0.8)(B, Sq, D)),
        "k_cache": _w((lambda *s: torch.randn(*s, dtype=torch.bfloat16) * 0.8)(B, Hkv, Sk, Dh)),
        "v_cache": _w((lambda *s: torch.randn(*s, dtype=torch.bfloat16) * 0.05)(B, Hkv, Sk, Dh)),
        "wq": _w((lambda *s: torch.randn(*s, dtype=torch.bfloat16) * 0.8)(D, Hq * Dh) * (D ** -0.5)),
        "wo": _w((lambda *s: torch.randn(*s, dtype=torch.bfloat16) * 0.05)(Hq * Dh, D) * ((Hq * Dh) ** -0.5)),
    }

def reference(x, k_cache, v_cache, wq, wo):
    B, Sq, D = x.shape
    Hq, Dh = 32, 128
    Hkv = k_cache.shape[1]
    rep = Hq // Hkv
    q = (lambda x, *d: x.permute(*d))((x @ wq).reshape(B, Sq, Hq, Dh), 0, 2, 1, 3)
    k = (lambda x, n, axis: torch.repeat_interleave(x, n, dim=axis))(k_cache, rep, axis=1)
    v = (lambda x, n, axis: torch.repeat_interleave(x, n, dim=axis))(v_cache, rep, axis=1)
    scores = torch.einsum("bhqd,bhkd->bhqk", q, k) * (Dh ** -0.5)
    p = _softmax(scores, axis=-1)
    o = torch.einsum("bhqk,bhkd->bhqd", p, v)
    return (lambda x, *d: x.permute(*d))(o, 0, 2, 1, 3).reshape(B, Sq, Hq * Dh) @ wo
```

```python
import re

def _split_ops(s):
    out, depth, cur = [], 0, ""
    for ch in s:
        if ch in "[(": depth += 1
        if ch in "])": depth -= 1
        if ch == "," and depth == 0:
            out.append(cur.strip()); cur = ""
        else:
            cur += ch
    if cur.strip(): out.append(cur.strip())
    return out

_REG = re.compile(r"^(-|\|)?(abs\()?([vas])(\d+|\[(\d+):(\d+)\])\)?\|?$")
def regs_of(tok):
    tok = tok.strip()
    if tok in ("vcc",): return ["vcc"]
    if tok in ("vcc_lo", "vcc_hi"): return ["vcc"]
    if tok in ("exec", "exec_lo", "exec_hi"): return ["exec"]
    if tok == "m0": return ["m0"]
    m = _REG.match(tok)
    if not m: return []
    k = m.group(3)
    if m.group(5) is not None:
        return [f"{k}{i}" for i in range(int(m.group(5)), int(m.group(6)) + 1)]
    return [f"{k}{int(m.group(4))}"]

MODS = ("offen", "idxen", "lds", "nt", "sc0", "sc1", "off", "glc")
TRANS = ("v_exp_f32", "v_log_f32", "v_rcp_f32", "v_rsq_f32", "v_sqrt_f32", "v_sin_f32", "v_cos_f32")

class Ins:
    __slots__ = ("text", "op", "kind", "R", "W", "ann", "ops")
    def __init__(self, text, ann=None):
        self.text = text; self.ann = ann or {}
        t = text.split(";")[0].strip()
        if t.endswith(":") or t.startswith(".") or not t:
            self.op = "label"; self.kind = "label"; self.R = set(); self.W = set(); self.ops = []; return
        sp = t.split(None, 1)
        op = sp[0]; rest = sp[1] if len(sp) > 1 else ""
        op = re.sub(r"_e(32|64)$", "", op)
        self.op = op
        toks = _split_ops(rest)
        mods = []
        if toks:
            last = toks[-1].split()
            toks[-1] = last[0]; mods = last[1:]
        self.ops = toks
        R, W = set(), set()
        def rd(i):
            if i < len(toks): R.update(regs_of(toks[i]))
        def wr(i):
            if i < len(toks): W.update(regs_of(toks[i]))
        n = len(toks)
        if op.startswith("v_mfma"):
            self.kind = "mfma"; wr(0); rd(1); rd(2); rd(3)
        elif op.startswith("ds_read") or op.startswith("ds_bpermute") or op.startswith("ds_swizzle"):
            self.kind = "ds"; wr(0); [rd(i) for i in range(1, n)]
        elif op.startswith("ds_write") or op.startswith("ds_add"):
            self.kind = "ds"; [rd(i) for i in range(n)]
        elif op.startswith("buffer_load"):
            self.kind = "vm"
            if "lds" in mods:
                [rd(i) for i in range(n)]; R.add("m0")
            else:
                wr(0); [rd(i) for i in range(1, n)]
        elif op.startswith("global_load") or op.startswith("flat_load"):
            self.kind = "vm"; wr(0); [rd(i) for i in range(1, n)]
        elif op.startswith("buffer_store") or op.startswith("global_store"):
            self.kind = "vm"; [rd(i) for i in range(n)]
        elif op.startswith("global_atomic") or op.startswith("buffer_atomic"):
            self.kind = "vm"
            if "sc0" in mods:
                wr(0); [rd(i) for i in range(1, n)]
            else:
                [rd(i) for i in range(n)]
        elif op.startswith("buffer_inv") or op.startswith("buffer_wbl2"):
            self.kind = "vm"
        elif op.startswith("s_load") or op.startswith("s_memtime") or op.startswith("s_memrealtime") or op.startswith("s_atomic"):
            self.kind = "smem"; wr(0); [rd(i) for i in range(1, n)]
            if op.startswith("s_atomic"): rd(0)
        elif op == "s_waitcnt": self.kind = "wait"
        elif op == "s_barrier": self.kind = "barrier"
        elif op == "s_nop": self.kind = "nop"
        elif op in ("s_endpgm", "s_branch", "s_setprio", "s_sleep"): self.kind = "ctl"
        elif op.startswith("s_cbranch"):
            self.kind = "ctl"
            if "scc" in op: R.add("scc")
            if "vcc" in op: R.add("vcc")
            if "exec" in op: R.add("exec")
        elif op.startswith("s_cmp") or op.startswith("s_bitcmp"):
            self.kind = "salu"; [rd(i) for i in range(n)]; W.add("scc")
        elif op.startswith("s_"):
            self.kind = "salu"; wr(0); [rd(i) for i in range(1, n)]
            if op in ("s_addk_i32", "s_mulk_i32"): rd(0)
            if op.startswith(("s_add", "s_sub", "s_and", "s_or", "s_xor", "s_lshl", "s_lshr", "s_ashr", "s_min", "s_max", "s_not", "s_andn2", "s_bfe")): W.add("scc")
            if op.startswith(("s_addc", "s_subb", "s_cselect")): R.add("scc")
            if "saveexec" in op: R.add("exec"); W.add("exec")
        elif op.startswith("v_cmp"):
            self.kind = "valu"; wr(0); [rd(i) for i in range(1, n)]
            if op.startswith("v_cmpx"): W.add("exec")
        elif op in ("v_readfirstlane_b32", "v_readlane_b32"):
            self.kind = "valu"; wr(0); [rd(i) for i in range(1, n)]
        elif op.startswith("v_permlane") and "swap" in op:
            self.kind = "valu"; wr(0); wr(1); rd(0); rd(1)
        elif op.startswith("v_"):
            self.kind = "valu"; wr(0)
            start = 1
            if op in ("v_add_co_u32", "v_sub_co_u32", "v_addc_co_u32", "v_subb_co_u32", "v_div_scale_f32", "v_mad_u64_u32"):
                wr(1); start = 2
            [rd(i) for i in range(start, n)]
            if op.startswith(("v_fmac", "v_pk_fmac", "v_writelane", "v_dot2c")): rd(0)
            if op == "v_cndmask_b32" and n == 3: R.add("vcc")
        else:
            raise ValueError("unknown op " + text)
        if self.kind in ("valu", "mfma", "vm", "ds"): R.add("exec")
        self.R, self.W = R, W

class Prog:
    def __init__(self): self.blocks = {}; self.order = []; self.cur = None
    def block(self, name):
        assert name not in self.blocks, name
        self.blocks[name] = []; self.order.append(name); self.cur = self.blocks[name]; return self
    def __call__(self, text, **ann):
        for line in text.strip("\n").split("\n"):
            line = line.strip()
            if line: self.cur.append(Ins(line, ann))
    def text(self):
        out = []
        for b in self.order:
            for i in self.blocks[b]:
                out.append(i.text if i.kind == "label" else "    " + i.text)
        return "\n".join(out) + "\n"
    def trace(self, names):
        t = []
        for n in names: t += self.blocks[n]
        return t

def mfma_passes(op):
    if "32x32x16" in op or "32x32x8" in op: return 8
    if "16x16x32" in op or "16x16x16" in op: return 4
    raise ValueError(op)

def parse_wait(text):
    vm = re.search(r"vmcnt\((\d+)\)", text); lg = re.search(r"lgkmcnt\((\d+)\)", text)
    return (int(vm.group(1)) if vm else None, int(lg.group(1)) if lg else None)

def check_trace(tr, name, init_regs=(), verbose=False):
    errs = []
    pos = 0
    valu_w = {}; trans_w = {}; mfma_w = {}; mfma_c = {}; salu_w = {}; valu_sw = {}; store_r = {}
    vmq = []; lgq = []
    epoch = 0
    ev = []
    written = set(init_regs) | {"exec", "m0_dummy"}
    def err(i, msg): errs.append(f"[{name}] #{idx} '{i.text}': {msg}")
    for idx, i in enumerate(tr):
        k = i.kind
        if k == "label": continue
        for r in i.R:
            if r not in written and r not in ("scc", "vcc") and not i.ann.get("uninit_ok"):
                err(i, f"reads never-written {r}"); written.add(r)
        touched = i.R | i.W
        for q, nm in ((vmq, "vm"), (lgq, "lgkm")):
            for e in q:
                if e["dst"] & touched:
                    err(i, f"touches {sorted(e['dst'] & touched)[:4]} with pending {nm} op '{e['text']}'")
        if len(vmq) > 63: err(i, "vmcnt overflow")
        def need(tab, regs, n, what):
            for r in regs:
                if r in tab:
                    p = tab[r]
                    p0 = p[0] if isinstance(p, tuple) else p
                    if pos - p0 - 1 < n:
                        err(i, f"{what}: {r} needs {n} wait states, has {pos - p0 - 1}")
        vregs_R = [r for r in i.R if r[0] in "va" and r != "vcc"]
        vregs_W = [r for r in i.W if r[0] in "va" and r != "vcc"]
        if k == "mfma":
            need(valu_w, vregs_R, 2, "VALU->MFMA")
            D = regs_of(i.ops[0]); Aop = regs_of(i.ops[1]); Bop = regs_of(i.ops[2]); C = regs_of(i.ops[3])
            for r in Aop + Bop:
                if r in mfma_w:
                    p0, ps, _ = mfma_w[r]; n = {2: 5, 4: 8, 8: 12, 16: 20}[ps]
                    if pos - p0 - 1 < n: err(i, f"MFMA D->A/B {r} needs {n} has {pos-p0-1}")
            for r in C:
                if r in mfma_w:
                    p0, ps, Dp = mfma_w[r]
                    if tuple(Dp) == tuple(C) and ps == mfma_passes(i.op): continue
                    n = {2: 4, 4: 6, 8: 10, 16: 18}[ps]
                    if pos - p0 - 1 < n: err(i, f"MFMA D->C overlap {r} needs {n}")
            for r in D:
                if r in mfma_w and r not in C:
                    p0, ps, Dp = mfma_w[r]; n = {2: 4, 4: 6, 8: 10, 16: 18}[ps]
                    if pos - p0 - 1 < n: err(i, f"MFMA D->D WAW {r} needs {n} has {pos-p0-1}")
            if "exec" in valu_sw and pos - valu_sw["exec"] - 1 < 4: err(i, "VALU exec->MFMA")
        elif k in ("valu", "vm", "ds"):
            for r in set(vregs_R) | set(vregs_W):
                if r in mfma_w:
                    p0, ps, _ = mfma_w[r]; n = {2: 5, 4: 8, 8: 12, 16: 20}[ps]
                    if pos - p0 - 1 < n: err(i, f"MFMA D->{k} {r} needs {n} has {pos-p0-1}")
            if k == "valu":
                for r in vregs_W:
                    if r in mfma_c:
                        p0, ps = mfma_c[r]; n = {2: 1, 4: 3, 8: 7, 16: 15}[ps]
                        if pos - p0 - 1 < n: err(i, f"MFMA C-read->VALU write {r} needs {n}")
                    if r in store_r and pos - store_r[r] - 1 < 2: err(i, f"store data WAR {r}")
                if i.op not in TRANS: need(trans_w, vregs_R, 1, "trans->VALU")
                sr = [r for r in i.R if r[0] == "s" and r != "scc" or r == "vcc"]
                if i.op in ("v_readlane_b32", "v_writelane_b32"): need(valu_sw, sr, 4, "VALU sgpr->lanesel")
                else: need(valu_sw, sr, 2, "VALU sgpr->VALU const")
                if i.op in ("v_readfirstlane_b32", "v_readlane_b32"): need(valu_w, vregs_R, 1, "VALU->readlane")
                if i.op.startswith("v_permlane"): need(valu_w, vregs_R, 2, "VALU->permlane")
                if "dpp" in i.text or "row_" in i.text or "quad_perm" in i.text: need(valu_w, vregs_R, 2, "VALU->DPP")
            if k == "vm":
                need(valu_sw, [r for r in i.R if r[0] == "s" and r != "scc"], 5, "VALU sgpr->VMEM")
                if "m0" in i.R: need(salu_w, ["m0"], 1, "SALU m0->LDS-DMA")
            if k in ("vm", "ds"):
                for r in vregs_W:
                    if r in store_r and pos - store_r[r] - 1 < 1: err(i, f"store data WAR(mem) {r}")
        elif k == "salu":
            need(valu_sw, [r for r in i.R if r[0] == "s" and r != "scc" or r == "vcc"], 1, "VALU sgpr->SALU (pad)")
        elif k == "ctl" and "vcc" in i.R:
            need(valu_sw, ["vcc"], 1, "VALU vcc->branch (pad)")
        if k == "mfma":
            ps = mfma_passes(i.op); D = regs_of(i.ops[0])
            for r in D: mfma_w[r] = (pos, ps, D); valu_w.pop(r, None); trans_w.pop(r, None)
            for r in regs_of(i.ops[3]): mfma_c[r] = (pos, ps)
        elif k == "valu":
            for r in i.W:
                if r[0] in "va" and r != "vcc":
                    valu_w[r] = pos; mfma_w.pop(r, None)
                    if i.op in TRANS: trans_w[r] = pos
                    else: trans_w.pop(r, None)
                else: valu_sw[r] = pos
        elif k == "salu":
            for r in i.W: salu_w[r] = pos; valu_sw.pop(r, None)
        if k == "vm":
            e = dict(dst={r for r in i.W}, text=i.text, ann=i.ann)
            vmq.append(e)
            if len(vmq) > 63: err(i, f"more than 63 vm ops outstanding ({len(vmq)})")
            if "ldsw" in i.ann:
                x = dict(t="w", wave=name, reg=i.ann["ldsw"], issue=epoch, done=None, idx=idx); e["ev"] = x; ev.append(x)
            if "store" in i.op and ("x4" in i.op or "x3" in i.op):
                for r in regs_of(i.ops[0] if i.op.startswith("buffer") else i.ops[1]): store_r[r] = pos
            for r in i.W: mfma_w.pop(r, None); valu_w.pop(r, None)
        if k == "ds":
            e = dict(dst={r for r in i.W}, text=i.text, ann=i.ann); lgq.append(e)
            if "ldsr" in i.ann:
                x = dict(t="r", wave=name, reg=i.ann["ldsr"], issue=epoch, done=None, idx=idx); e["ev"] = x; ev.append(x)
            if "ldsw" in i.ann:
                x = dict(t="w", wave=name, reg=i.ann["ldsw"], issue=epoch, done=None, idx=idx); e["ev"] = x; ev.append(x)
            for r in i.W: mfma_w.pop(r, None); valu_w.pop(r, None)
        if k == "smem":
            lgq.append(dict(dst=set(i.W), text=i.text, ann=i.ann, smem=True))
        if k == "wait":
            vm, lg = parse_wait(i.text)
            if vm is not None:
                while len(vmq) > vm:
                    e = vmq.pop(0)
                    if "ev" in e: e["ev"]["done"] = epoch; e["ev"]["done_idx"] = idx
            if lg is not None:
                if any(e.get("smem") for e in lgq) and lg != 0:
                    if len(lgq) > lg: err(i, "counted lgkmcnt with SMEM outstanding")
                else:
                    while len(lgq) > lg:
                        e = lgq.pop(0)
                        if "ev" in e: e["ev"]["done"] = epoch; e["ev"]["done_idx"] = idx
        if k == "barrier":
            epoch += 1
        written |= i.W
        pos += (int(i.ops[0]) + 1) if k == "nop" else 1
    return errs, ev, epoch

def check_lds(all_ev):
    errs = []
    W = [e for e in all_ev if e["t"] == "w"]; Rr = [e for e in all_ev if e["t"] == "r"]
    def ov(a, b): return a[0] < b[0] + b[1] and b[0] < a[0] + a[1]
    for r in Rr:
        matched = 0
        for w in W:
            if not ov(r["reg"], w["reg"]): continue
            if w["reg"][2] == r["reg"][2]:
                matched += 1
                if w["done"] is None: errs.append(f"read {r} of write never waited {w}"); continue
                if w["wave"] == r["wave"]:
                    if not (w["done_idx"] < r["idx"]): errs.append(f"same-wave read before wait: {r} vs {w}")
                elif not (w["done"] < r["issue"]):
                    errs.append(f"RAW: read {r['reg']} by {r['wave']} epoch {r['issue']} but write by {w['wave']} done epoch {w['done']}")
            else:
                before = w["done"] is not None and (w["done"] < r["issue"] or (w["wave"] == r["wave"] and w["done_idx"] < r["idx"]))
                if r["done"] is None: errs.append(f"read never waited {r}"); continue
                after = (w["issue"] > r["done"]) or (w["wave"] == r["wave"] and w["idx"] > r["done_idx"])
                if not (before or after):
                    errs.append(f"WAR/overlap: read {r['reg']} by {r['wave']} [{r['issue']},{r['done']}] vs write {w['reg']} by {w['wave']} [{w['issue']},{w['done']}]")
                elif before:
                    ms = [m for m in W if m["reg"][2] == r["reg"][2] and ov(m["reg"], r["reg"]) and ov(m["reg"], w["reg"])]
                    for m in ms:
                        older = (m["wave"] == w["wave"] and m["idx"] > w["idx"]) or (m["issue"] > w["done"])
                        if not older:
                            errs.append(f"clobber: {w['reg']} by {w['wave']} may land after wanted {m['reg']} before read by {r['wave']} epoch {r['issue']}")
        if matched == 0: errs.append(f"read {r} has no matching write")
    return errs
```

```python
import sys, struct
from asmdsl import *

CFG = dict(NT="nt", XA=40)
LDS_W = 131072
SCALE = 1.4426950408889634 / (128 ** 0.5)
def f32bits(x): return struct.unpack("<I", struct.pack("<f", x))[0]

class Em:
    def __init__(self, p): self.p = p; self.vmq = []; self.lg = []; self.log = None
    def _e(self, t, a):
        self.p(t, **a)
        if self.log is not None: self.log.append(t)
    def __call__(self, t, **a): self._e(t, a)
    def vm(self, t, tag=None, **a): self._e(t, a); self.vmq.append(tag)
    def ds(self, t, tag=None, **a): self._e(t, a); self.lg.append(tag)
    def need_vm(self, tag, cap=63):
        idx = [i for i, x in enumerate(self.vmq) if x == tag]
        if idx: self.wait_vm(min(len(self.vmq) - 1 - idx[-1], cap))
    def wait_vm(self, n, force=False):
        if len(self.vmq) > n or force:
            self._e(f"s_waitcnt vmcnt({n})", {})
            self.vmq = self.vmq[max(0, len(self.vmq) - n):] if n else []
    def need_lg(self, tag):
        idx = [i for i, x in enumerate(self.lg) if x == tag]
        if idx: self.wait_lg(min(len(self.lg) - 1 - idx[-1], 15))
    def wait_lg(self, n):
        if len(self.lg) > n:
            self._e(f"s_waitcnt lgkmcnt({n})", {})
            self.lg = self.lg[len(self.lg) - n:] if n else []

def V(n, c=1): return f"v{n}" if c == 1 else f"v[{n}:{n+c-1}]"
def A(n, c=1): return f"a{n}" if c == 1 else f"a[{n}:{n+c-1}]"
def S(n, c=1): return f"s{n}" if c == 1 else f"s[{n}:{n+c-1}]"
MF = "v_mfma_f32_16x16x32_bf16"

vO = 16; vSA, vSB = 112, 136; vP = 160; vCI = 172; vKA = 184; vVA = 192; vWA = 208; vT = 212
aQF, aKF, aVF, aL, aONE = 0, 48, 80, 112, 124
def O(a, t): return vO + (a * 8 + t) * 4
def Sb(buf, T, a): return buf + (a * 2 + T) * 4
def QF(a, s): return aQF + (a * 4 + s) * 4
def KF(T, s): return aKF + (s * 2 + T) * 4
def VF(t): return aVF + t * 4
def XF(a, ks):
    i = ks * 3 + a
    return 128 + 4 * i if i < 32 else 4 * (i - 32)
sK, sV, sX, sWQ = 20, 24, 28, 32
sW_, sB_, sH_, sJ_, sG_, sBH = 36, 37, 38, 39, 40, 41

def common_setup(p, lab_end, nwg=256):
    p(f"""
    s_cmp_ge_u32 s2, {nwg}
    s_cbranch_scc1 {lab_end}
    s_load_dwordx8 s[4:11], s[0:1], 0
    s_load_dwordx4 s[12:15], s[0:1], 32
    s_load_dwordx4 s[16:19], s[0:1], 48
    v_lshrrev_b32 v1, 6, v0
    v_and_b32 v0, 63, v0
    s_and_b32 s{sG_}, s2, 7
    v_readfirstlane_b32 s{sW_}, v1
    s_lshr_b32 s{sJ_}, s2, 3
    s_and_b32 s{sJ_}, s{sJ_}, 3
    s_lshr_b32 s{sB_}, s2, 5
    s_lshl_b32 s{sH_}, s{sG_}, 2
    s_add_u32 s{sH_}, s{sH_}, s{sJ_}
    s_lshl_b32 s{sBH}, s{sB_}, 5
    s_add_u32 s{sBH}, s{sBH}, s{sH_}
    s_waitcnt lgkmcnt(0)
    """)

def srd(p, d, base, off_lo, off_hi, size):
    p(f"s_add_u32 s{d}, s{base}, {off_lo}")
    p(f"s_addc_u32 s{d+1}, s{base+1}, {off_hi}")
    p(f"s_and_b32 s{d+1}, s{d+1}, 0xffff")
    p(f"s_mov_b32 s{d+2}, {size}")
    p(f"s_mov_b32 s{d+3}, 0x20000")

def dma_patterns(e, vk, vv, vstride_log2=8):
    e("v_lshrrev_b32 v1, 4, v0")
    e("v_and_b32 v2, 15, v0")
    if vk is not None:
        e("v_xor_b32 v3, v2, v1")
        e("v_lshlrev_b32 v3, 4, v3")
        e(f"v_lshl_add_u32 v{vk}, v1, 8, v3")
        for i in range(1, 4): e(f"v_xor_b32 v{vk+i}, {64*i}, v{vk}")
    e("v_lshlrev_b32 v3, 1, v1")
    e("v_xor_b32 v3, v2, v3")
    e("v_lshlrev_b32 v3, 4, v3")
    e(f"v_lshl_add_u32 v{vv}, v1, {vstride_log2}, v3")
    e(f"v_xor_b32 v{vv+1}, 128, v{vv}")

def v_addr_setup(e, dst, nwin):
    e("v_lshrrev_b32 v5, 2, v0")
    e("v_and_b32 v6, 3, v0")
    e("v_and_b32 v7, 7, v5")
    e("v_lshlrev_b32 v7, 1, v7")
    e("v_lshrrev_b32 v8, 1, v6")
    e("v_xor_b32 v7, v7, v8")
    e("v_and_b32 v8, 1, v6")
    e("v_lshlrev_b32 v8, 3, v8")
    e("v_lshl_add_u32 v8, v5, 8, v8")
    for t in range(8):
        e(f"v_xor_b32 v9, {2*t}, v7")
        e(f"v_lshl_add_u32 v{dst+t}, v9, 4, v8")
        for w in range(1, nwin): e(f"v_add_u32 v{dst+8*w+t}, {0x10000*w}, v{dst+t}")

def k_addr_setup(e):
    e("v_lshrrev_b32 v1, 4, v0")
    e("v_and_b32 v2, 15, v0")
    e("v_xor_b32 v3, v1, v2")
    for s in range(4):
        e(f"v_xor_b32 v4, {4*s}, v3")
        e("v_lshlrev_b32 v4, 4, v4")
        e(f"v_lshl_add_u32 v{vKA+s}, v2, 8, v4")
        e(f"v_add_u32 v{vKA+4+s}, 0x10000, v{vKA+s}")

def k_reads(slot, tile):
    out = []
    for s in range(4):
        for T in range(2):
            reg = vKA + 4 * (slot >> 2) + s; imm = (slot & 3) * 16384 + T * 4096
            out.append((f"ds_read_b128 {A(KF(T, s), 4)}, v{reg} offset:{imm}", "K", dict(ldsr=(slot * 16384, 8192, ("K", tile)))))
    return out

def v_reads(t, slot, tile):
    out = []
    for rho in range(2):
        reg = vVA + 8 * (slot >> 2) + t; imm = (slot & 3) * 16384 + 8192 + rho * 4096
        out.append((f"ds_read_b64_tr_b16 {A(VF(t) + 2 * rho, 2)}, v{reg} offset:{imm}", "V", dict(ldsr=(slot * 16384 + 8192, 8192, ("V", tile)))))
    return out

def qk_mfmas(dst, first_c):
    out = []
    for a in range(3):
        for s in range(4):
            for T in range(2):
                d = V(Sb(dst, T, a), 4)
                out.append(f"{MF} {d}, {A(KF(T, s), 4)}, {A(QF(a, s), 4)}, {d if s > 0 else first_c(a)}")
    return out

def softmax_fill(cur):
    out = []
    for a in range(3):
        for T in range(2):
            for r in range(4):
                x = Sb(cur, T, a) + r
                out.append((2, f"v_exp_f32 v{x}, v{x}"))
        for T in range(2):
            for y in range(2):
                x = Sb(cur, T, a) + 2 * y
                out.append((1, f"v_cvt_pk_bf16_f32 v{vP + 4*a + 2*T + y}, v{x}, v{x+1}"))
    return out

def pv_mfmas(a):
    out = [f"{MF} {V(O(a, t), 4)}, {A(VF(t), 4)}, {V(vP + 4*a, 4)}, {V(O(a, t), 4)}" for t in range(8)]
    out.append(f"{MF} {A(aL + 4*a, 4)}, {A(aONE, 4)}, {V(vP + 4*a, 4)}, {A(aL + 4*a, 4)}")
    return out

def iteration(e, i):
    cur, nxt = (vSA, vSB) if i % 2 == 0 else (vSB, vSA)
    last = i == 63
    slot = (i + 1) & 7
    sm = softmax_fill(cur)
    def fill(budget):
        while sm and sm[0][0] <= budget:
            c, t = sm.pop(0); e(t); budget -= c
        return budget
    if not last:
        e.need_lg("K")
        for m in qk_mfmas(nxt, lambda a: V(vCI + 4 * a, 4)):
            e(m); fill(2)
        e.need_lg("V")
    else:
        for _ in range(12): e(sm.pop(0)[1])
        e.need_lg("V")
        e("s_nop 0")
    pv = [pv_mfmas(a) for a in range(3)]
    for m in pv[0]:
        e(m); fill(2)
    if last:
        while len(sm) > 12: e(sm.pop(0)[1])
        e("s_nop 1")
    else:
        e("s_barrier")
    kr = k_reads(slot, i + 2) if i + 2 <= 63 else []
    for m in pv[1]:
        e(m); b = fill(2)
        while kr and b >= 1:
            t, tag, ann = kr.pop(0); e.ds(t, tag, **ann); b -= 1
    assert not kr
    if sm:
        while sm: e(sm.pop(0)[1])
        e("s_nop 1")
    for k, m in enumerate(pv[2]):
        e(m)
        if k < 8 and not last:
            for t, tag, ann in v_reads(k, slot, i + 1): e.ds(t, tag, **ann)

def looped(p, e, shadow, label, n, period, ctr, body):
    if shadow:
        texts = []
        for i in range(n):
            e.log = []; body(i); texts.append(e.log); e.log = None
        for i in range(period, n):
            assert texts[i] == texts[i - period], (label, i, [x for x in zip(texts[i], texts[i-period]) if x[0] != x[1]][:3], len(texts[i]), len(texts[i-period]))
        return texts[:period]
    e(f"s_mov_b32 s{ctr}, 0")
    p(f"{label}:")
    texts = []
    q0 = (len(e.vmq), len(e.lg))
    for i in range(period):
        e.log = []; body(i); texts.append(e.log); e.log = None
    e(f"s_add_u32 s{ctr}, s{ctr}, 1\ns_cmp_lt_u32 s{ctr}, {n // period}\ns_cbranch_scc1 {label}")
    return texts

def w_dma(e, ks):
    for z in range(3):
        e(f"s_add_u32 m0, s{50+z}, {LDS_W + (ks & 3) * 8192}")
        e(f"s_add_u32 s56, s{53+z}, {ks * 262144}")
        e.vm(f"buffer_load_dwordx4 v{vT}, {S(sWQ,4)}, s56 offen lds", tag=("W", ks), ldsw=(LDS_W + (ks & 3) * 8192, 8192, ("W", ks)))
def x_loads(e, ks):
    for a in range(3):
        e.vm(f"buffer_load_dwordx4 {A(XF(a, ks), 4)}, v{vT+1}, {S(sX,4)}, s{57+a} offen offset:{64*ks}", tag=("X", ks))
def w_reads(t, ks):
    out = []
    for rho in range(2):
        imm = (ks & 3) * 8192 + rho * 1024 + 8 * (t & 1)
        out.append((f"ds_read_b64_tr_b16 {A(VF(t) + 2*rho, 2)}, v{vWA + (t >> 1)} offset:{imm}", ("WF", t),
                    dict(ldsr=(LDS_W + (ks & 3) * 8192, 8192, ("W", ks)))))
    return out

def rowmax_to_ci(e, vm):
    e(f"v_lshlrev_b32 v1, 2, v0\nv_xor_b32 v2, 64, v1\nv_xor_b32 v3, 128, v1")
    for addr in (2, 3):
        for a in range(3): e.ds(f"ds_bpermute_b32 v{8+a}, v{addr}, v{vm+a}", "bp")
        e.wait_lg(0)
        for a in range(3): e(f"v_max_f32 v{vm+a}, v{vm+a}, v{8+a}")
    for a in range(3):
        for r in range(4): e(f"v_sub_f32 v{vCI+4*a+r}, 0, v{vm+a}")

def gen_attn(p, shadow):
    name = "attn_kernel"
    T = {}
    p.block("a_entry")
    p(f".globl {name}\n.p2align 8\n.type {name},@function\n{name}:")
    common_setup(p, "L_a_end")
    p(f"s_lshl_b32 s44, s{sBH}, 19\ns_lshr_b32 s45, s{sBH}, 13")
    srd(p, sK, 6, "s44", "s45", "0x80000")
    srd(p, sV, 8, "s44", "s45", "0x80000")
    p(f"s_cmp_eq_u32 s{sW_}, 3\ns_cbranch_scc1 L_a_loader")
    p.block("a_pro")
    e = Em(p)
    e(f"s_mul_i32 s44, s{sB_}, 147456")
    srd(e, sX, 4, "s44", "0", "147456")
    e(f"s_lshl_b32 s44, s{sH_}, 8")
    e("s_sub_u32 s45, 0x400000, s44")
    srd(e, sWQ, 10, "s44", "0", "s45")
    for z in range(3):
        e(f"s_add_u32 s46, s{sW_}, {3*z}\ns_min_u32 s46, s46, 7")
        e(f"s_lshl_b32 s{50+z}, s46, 10\ns_lshl_b32 s{53+z}, s46, 15")
    for a in range(3): e(f"s_mov_b32 s{57+a}, {16384*a}")
    e("s_mov_b32 s60, 0")
    e("v_lshrrev_b32 v1, 1, v0\nv_and_b32 v2, 1, v0\nv_lshlrev_b32 v2, 7, v2\nv_lshl_add_u32 v4, v1, 13, v2")
    e(f"s_lshl_b32 s46, s{sW_}, 2")
    for t in range(4):
        e(f"s_add_u32 s47, s46, {t}\ns_lshl_b32 s47, s47, 18\ns_add_u32 s47, s47, {128*8192}")
        e.vm(f"buffer_load_dword v{12+t}, v4, {S(sWQ,4)}, s47 offen", tag="touch")
    e("v_lshrrev_b32 v1, 4, v0\nv_and_b32 v2, 15, v0\nv_lshlrev_b32 v3, 2, v1\nv_xor_b32 v3, v2, v3\nv_lshlrev_b32 v3, 4, v3")
    e(f"v_lshl_add_u32 v{vT}, v1, 13, v3")
    e(f"s_mul_i32 s46, s{sW_}, 48")
    e(f"v_add_u32 v3, s46, v2\nv_lshlrev_b32 v3, 10, v3\nv_lshl_add_u32 v{vT+1}, v1, 4, v3")
    for ks in range(4):
        w_dma(e, ks); x_loads(e, ks)
    for ks in range(4, 12): x_loads(e, ks)
    e("v_lshrrev_b32 v1, 4, v0\nv_bfe_u32 v2, v0, 2, 2\nv_and_b32 v3, 3, v0")
    e("v_lshl_add_u32 v5, v1, 3, v2\nv_lshlrev_b32 v5, 8, v5")
    e(f"v_add_u32 v5, {LDS_W}, v5")
    for u in range(4):
        e(f"v_xor_b32 v6, {u}, v2\nv_lshl_add_u32 v6, v6, 2, v3\nv_lshl_add_u32 v{vWA+u}, v6, 4, v5")
    k_addr_setup(e)
    v_addr_setup(e, vVA, 2)
    e("s_mov_b32 s44, 0x3f803f80")
    for r in range(4): e(f"v_accvgpr_write_b32 a{aONE+r}, s44")
    for r in range(12): e(f"v_accvgpr_write_b32 a{aL+r}, 0")
    e.need_vm(("W", 0))
    e("s_barrier")
    for t in range(7):
        for tx, tag, ann in w_reads(t, 0): e.ds(tx, tag, **ann)
    for ks in range(16):
        k = 0
        for t in range(8):
            for a in range(3):
                if k == 0: e.need_vm(("X", ks))
                if a == 0: e.need_lg(("WF", t))
                e(f"{MF} {V(O(a, t), 4)}, {A(VF(t), 4)}, {A(XF(a, ks), 4)}, {V(O(a, t), 4) if ks else '0'}")
                if k == 0:
                    for tx, tag, ann in w_reads(7, ks): e.ds(tx, tag, **ann)
                if k == 5 and ks < 15:
                    e.wait_lg(0)
                    e.need_vm(("W", ks + 1))
                    e("s_barrier")
                    if ks + 4 < 16: w_dma(e, ks + 4)
                    if ks < 4: x_loads(e, 12 + ks)
                    for tt in range(2):
                        for tx, tag, ann in w_reads(tt, ks + 1): e.ds(tx, tag, **ann)
                if a == 2 and 2 <= t <= 6 and ks < 15:
                    for tx, tag, ann in w_reads(t, ks + 1): e.ds(tx, tag, **ann)
                k += 1
    e("s_nop 7")
    e(f"s_mov_b32 s44, {f32bits(SCALE):#x}")
    for a in range(3):
        for s in range(4):
            for hh in range(2):
                o = O(a, 2 * s + hh)
                for r in range(4): e(f"v_mul_f32 v{o+r}, s44, v{o+r}")
            for hh in range(2):
                o = O(a, 2 * s + hh)
                for y in range(2): e(f"v_cvt_pk_bf16_f32 v{vT+4+2*hh+y}, v{o+2*y}, v{o+2*y+1}")
            for r in range(4): e(f"v_accvgpr_write_b32 a{QF(a, s)+r}, v{vT+4+r}")
    e.wait_vm(0)
    e("s_barrier")
    for tx, tag, ann in k_reads(7, 0): e.ds(tx, tag, **ann)
    for a in range(3):
        for t in range(8):
            for r in range(4): e(f"v_mov_b32 v{O(a,t)+r}, 0")
    e.wait_lg(0)
    for m in qk_mfmas(vSA, lambda a: "0"): e(m)
    e("s_nop 7")
    for a in range(3):
        b0, b1 = Sb(vSA, 0, a), Sb(vSA, 1, a)
        e(f"v_max3_f32 v{4+a}, v{b0}, v{b0+1}, v{b0+2}")
        e(f"v_max3_f32 v{4+a}, v{4+a}, v{b0+3}, v{b1}")
        e(f"v_max3_f32 v{4+a}, v{4+a}, v{b1+1}, v{b1+2}")
        e(f"v_max_f32 v{4+a}, v{4+a}, v{b1+3}")
    rowmax_to_ci(e, 4)
    for tx, tag, ann in k_reads(0, 1): e.ds(tx, tag, **ann)
    for t in range(8):
        for tx, tag, ann in v_reads(t, 0, 0): e.ds(tx, tag, **ann)
    for a in range(3):
        for Tt in range(2):
            for r in range(4):
                x = Sb(vSA, Tt, a) + r
                e(f"v_sub_f32 v{x}, v{x}, v{4+a}")
    p.block("a_loop")
    T["loop"] = looped(p, e, shadow, "L_a_loop", 56, 8, 44, lambda i: iteration(e, i))
    p.block("a_tail")
    for i in range(56, 64): iteration(e, i)
    p.block("a_epi")
    p("L_a_norm:")
    e("s_nop 7")
    for a in range(3): e(f"v_accvgpr_read_b32 v{4+a}, a{aL+4*a}")
    for a in range(3): e(f"v_rcp_f32 v{8+a}, v{4+a}")
    e("s_nop 0")
    for a in range(3):
        for u in range(4):
            d = vSA + (a * 4 + u) * 4
            for hh in range(2):
                o = O(a, 2 * u + hh)
                for r in range(4): e(f"v_mul_f32 v{o+r}, v{8+a}, v{o+r}")
            for hh in range(2):
                o = O(a, 2 * u + hh)
                for y in range(2): e(f"v_cvt_pk_bf16_f32 v{d+2*hh+y}, v{o+2*y}, v{o+2*y+1}")
    e("s_cmp_eq_u32 s60, 1\ns_cbranch_scc1 L_a_store")
    for r in range(4): e(f"v_mov_b32 v{vT+4+r}, 0")
    e("s_nop 1")
    for k in range(12):
        e(f"{MF} {V(12,4)}, {V(vT+4,4)}, {V(vSA+4*k,4)}, {V(12,4) if k else '0'}")
    e(f"s_mov_b32 s45, {f32bits(2.0**100):#x}")
    e("v_cmp_nle_f32 s[46:47], v4, s45")
    e("v_cmp_nle_f32 s[48:49], v5, s45")
    e("v_cmp_nle_f32 vcc, v6, s45")
    e("s_nop 3")
    e("s_or_b64 s[46:47], s[46:47], s[48:49]\ns_or_b64 s[46:47], s[46:47], vcc")
    e("v_cmp_u_f32 vcc, v12, v12")
    e("s_nop 1")
    e("s_or_b64 s[46:47], s[46:47], vcc")
    e("s_cbranch_scc1 L_a_slow")
    p("L_a_store:")
    e(f"s_mul_i32 s44, s{sBH}, 36864\ns_mul_i32 s45, s{sW_}, 12288\ns_add_u32 s44, s44, s45")
    e("s_add_u32 s46, s18, s44\ns_addc_u32 s47, s19, 0")
    e("v_lshlrev_b32 v1, 4, v0")
    for k in range(12):
        if k % 4 == 0 and k: e("v_add_u32 v1, 4096, v1")
        e.vm(f"global_store_dwordx4 v1, {V(vSA+4*k,4)}, s[46:47] offset:{(k%4)*1024}", tag="st")
    e("s_endpgm")
    p.block("a_slow")
    p("L_a_slow:")
    es = Em(p)
    vk, vv = vSB + 12, vSB + 16
    ka, va = vSB, vSB + 4
    es("s_mov_b32 s60, 1")
    es(f"s_lshl_b32 s61, s{sW_}, 13\ns_add_u32 s61, s61, 98304")
    dma_patterns(es, vk, vv)
    for s in range(4): es(f"v_add_u32 v{ka+s}, s61, v{vKA+s}")
    for t in range(8): es(f"v_add_u32 v{va+t}, s61, v{vVA+t}")
    es("s_add_u32 s62, s61, 4096")
    for a in range(3): es(f"v_mov_b32 v{4+a}, 0xff800000")
    def dma_slow(srdn, regs, msk):
        for i in range(8):
            if i % 4 == 0: es(f"s_mov_b32 m0, s{61 + i//4}\ns_add_u32 s64, s63, {4096*(i//4)}")
            es.vm(f"buffer_load_dwordx4 v{regs+(i&msk)}, {S(srdn,4)}, s64 offen offset:{(i&3)*1024} lds")
    def k_tile_slow():
        dma_slow(sK, vk, 3)
        es.wait_vm(0)
        for s in range(4):
            for Tt in range(2): es.ds(f"ds_read_b128 {A(KF(Tt,s),4)}, v{ka+s} offset:{Tt*4096}")
        es.wait_lg(0)
    es("s_mov_b32 s63, 0")
    p("L_a_slow1:")
    k_tile_slow()
    for m in qk_mfmas(vSA, lambda a: "0"): es(m)
    es("s_nop 7")
    for a in range(3):
        b0, b1 = Sb(vSA, 0, a), Sb(vSA, 1, a)
        es(f"v_max3_f32 v{4+a}, v{4+a}, v{b0}, v{b0+1}")
        es(f"v_max3_f32 v{4+a}, v{4+a}, v{b0+2}, v{b0+3}")
        es(f"v_max3_f32 v{4+a}, v{4+a}, v{b1}, v{b1+1}")
        es(f"v_max3_f32 v{4+a}, v{4+a}, v{b1+2}, v{b1+3}")
    es("s_add_u32 s63, s63, 8192\ns_cmp_lt_u32 s63, 0x80000\ns_cbranch_scc1 L_a_slow1")
    rowmax_to_ci(es, 4)
    for a in range(3):
        for t in range(8):
            for r in range(4): es(f"v_mov_b32 v{O(a,t)+r}, 0")
    for r in range(12): es(f"v_accvgpr_write_b32 a{aL+r}, 0")
    es("s_mov_b32 s63, 0")
    p("L_a_slow2:")
    k_tile_slow()
    for m in qk_mfmas(vSA, lambda a: V(vCI + 4 * a, 4)): es(m)
    dma_slow(sV, vv, 1)
    es("s_nop 7")
    for c, t in softmax_fill(vSA):
        es(t)
        if "v_exp" in t: es("s_nop 0")
    es.wait_vm(0)
    for t in range(8):
        for rho in range(2): es.ds(f"ds_read_b64_tr_b16 {A(VF(t)+2*rho,2)}, v{va+t} offset:{rho*4096}")
    es.wait_lg(0)
    for a in range(3):
        for m in pv_mfmas(a): es(m)
    es("s_add_u32 s63, s63, 8192\ns_cmp_lt_u32 s63, 0x80000\ns_cbranch_scc1 L_a_slow2")
    es("s_branch L_a_norm")
    p.block("a_ld_pro")
    p("L_a_loader:")
    l = Em(p)
    vk, vv = 4, 8
    NT = CFG["NT"]; XA = CFG["XA"]
    dma_patterns(l, vk, vv)
    l(f"s_mov_b32 s48, s{sK}\ns_mov_b32 s49, s{sK+1}\ns_mov_b32 s50, 0x80000\ns_mov_b32 s51, 0x20000")
    l(f"s_add_u32 s{sK}, s{sK}, 8192\ns_addc_u32 s{sK+1}, s{sK+1}, 0\ns_mov_b32 s{sK+2}, {0x80000-8192}")
    for i in range(8):
        if i % 4 == 0: l(f"s_mov_b32 m0, {7*16384 + 4096*(i//4)}\ns_mov_b32 s52, {4096*(i//4)}")
        l.vm(f"buffer_load_dwordx4 v{vk+(i&3)}, s[48:51], s52 offen offset:{(i&3)*1024} {NT} lds", tag=("U", -1), ldsw=(7*16384, 8192, ("K", 0)))
    l("s_mov_b32 s53, 0")
    def unit(u):
        slot = u & 7
        l("s_add_u32 s54, s53, 4096")
        if u < 63:
            for i in range(8):
                if i % 4 == 0: l(f"s_mov_b32 m0, {slot*16384 + 4096*(i//4)}\ns_nop 0")
                l.vm(f"buffer_load_dwordx4 v{vk+(i&3)}, {S(sK,4)}, s{53 + i//4} offen offset:{(i&3)*1024} {NT} lds", tag=("U", u),
                     ldsw=(slot*16384, 8192, ("K", u + 1)))
        for i in range(8):
            if i % 4 == 0: l(f"s_mov_b32 m0, {slot*16384 + 8192 + 4096*(i//4)}\ns_nop 0")
            l.vm(f"buffer_load_dwordx4 v{vv+(i&1)}, {S(sV,4)}, s{53 + i//4} offen offset:{(i&3)*1024} {NT} lds", tag=("U", u),
                 ldsw=(slot*16384 + 8192, 8192, ("V", u)))
        l("s_add_u32 s53, s53, 8192")
    for u in range(3): unit(u)
    extra = {0: 3, 3: 4, 6: 5, 9: 6}
    for wb in range(16):
        l("s_barrier")
        if wb in extra:
            l.wait_vm(47, force=True); unit(extra[wb])
    l.need_vm(("U", 0))
    l("s_barrier")
    l.need_vm(("U", 1))
    def bodyA(i):
        l("s_barrier")
        l.wait_vm(47, force=True); unit(i + 7)
    p.block("a_ld_A")
    T["ldA"] = looped(p, l, shadow, "L_a_ldA", XA, 8, 55, bodyA)
    p.block("a_ld_T")
    if not shadow: l.vmq = ([("U", u) for u in range(XA + 7 - 4, XA + 7) for _ in range(16)])[-63:]
    l("s_barrier")
    l("s_barrier")
    l.wait_vm(47, force=True)
    nB = ((58 - (XA + 2)) // 8) * 8
    def bodyB(k):
        i = XA + 2 + k
        l("s_barrier")
        unit(i + 5)
        l.wait_vm(47, force=True)
    p.block("a_ld_B")
    T["ldB"] = looped(p, l, shadow, "L_a_ldB", nB, 8, 55, bodyB)
    p.block("a_ld_E")
    if not shadow: l.vmq = ([("U", u) for u in range(XA + 2 + nB + 2, XA + 2 + nB + 5) for _ in range(16)])[-47:]
    for i in range(XA + 2 + nB, 63):
        l("s_barrier")
        if i + 5 <= 63: unit(i + 5)
        if i + 2 <= 63:
            l.need_vm(("U", i + 2), cap=47 if i + 6 <= 63 else 63)
    l("s_endpgm")
    p.block("a_end")
    p("L_a_end:\ns_endpgm")
    return T

def descriptor(name, vgpr, acc, sgpr=96):
    return f""".amdhsa_kernel {name}
  .amdhsa_next_free_vgpr {vgpr}
  .amdhsa_next_free_sgpr {sgpr}
  .amdhsa_accum_offset {acc}
  .amdhsa_group_segment_fixed_size 0
  .amdhsa_kernarg_size 64
  .amdhsa_user_sgpr_count 2
  .amdhsa_user_sgpr_kernarg_segment_ptr 1
  .amdhsa_system_sgpr_workgroup_id_x 1
.end_amdhsa_kernel
"""

INIT = ["s0", "s1", "s2", "v0"]
def run_checks(ps, traces):
    errs = []; ev = []; ep = {}
    for nm, names in traces.items():
        er, e_, n = check_trace(ps.trace(names), nm, INIT)
        errs += er; ev += [x for x in e_]; ep[nm] = n
    return errs, ev, ep
```

```python
from gen1 import *
OXSIZE = 256 * 36864
def gemm_phase(e, nsteps, reads, bfrag, pre_step, hook):
    for t in range(7):
        for tx, tag, ann in reads(t, 0): e.ds(tx, tag, **ann)
    for ks in range(nsteps):
        k = 0
        for t in range(8):
            for a in range(3):
                if k == 0: pre_step(ks)
                if a == 0: e.need_lg(("WF", t))
                e(f"{MF} {V(O(a, t), 4)}, {A(VF(t), 4)}, {bfrag(a, ks)}, {V(O(a, t), 4) if ks else '0'}")
                if k == 0:
                    for tx, tag, ann in reads(7, ks): e.ds(tx, tag, **ann)
                if k == 5 and ks < nsteps - 1:
                    hook(ks)
                    for tt in range(2):
                        for tx, tag, ann in reads(tt, ks + 1): e.ds(tx, tag, **ann)
                if a == 2 and 2 <= t <= 6 and ks < nsteps - 1:
                    for tx, tag, ann in reads(t, ks + 1): e.ds(tx, tag, **ann)
                k += 1

def gen_oproj(p):
    name = "oproj_kernel"
    sWO, sOX = 20, 24
    p.block("o_entry")
    p(f".globl {name}\n.p2align 8\n.type {name},@function\n{name}:")
    common_setup(p, "L_o_end")
    e = Em(p)
    e(f"s_lshl_b32 s44, s{sG_}, 19\ns_lshl_b32 s45, s{sJ_}, 8\ns_add_u32 s44, s44, s45\ns_sub_u32 s45, 0x400000, s44")
    srd(e, sWO, 12, "s44", "0", "s45")
    e(f"s_lshl_b32 s44, s{sB_}, 5\ns_lshl_b32 s45, s{sG_}, 2\ns_add_u32 s44, s44, s45\ns_mul_i32 s44, s44, 36864")
    srd(e, sOX, 18, "s44", "0", str(4 * 36864))
    vv = 10
    dma_patterns(e, None, vv, 10)
    e(f"s_lshl_b32 s50, s{sW_}, 11\ns_lshl_b32 s51, s{sW_}, 13")
    def wshare(em, jj):
        for tau in range(4 * jj, 4 * jj + 4):
            for z in range(2):
                em(f"s_add_u32 m0, s50, {tau*8192 + z*1024}")
                em(f"s_add_u32 s56, s51, {tau*32768 + z*4096}")
                em.vm(f"buffer_load_dwordx4 v{vv+z}, {S(sWO,4)}, s56 offen lds", tag=("W", jj), ldsw=(tau*8192, 8192, ("WO", tau)))
    p(f"s_cmp_eq_u32 s{sW_}, 3\ns_cbranch_scc1 L_o_w3")
    p.block("o_cw")
    e(f"s_mul_i32 s44, s{sW_}, 12288\nv_lshlrev_b32 v1, 4, v0\nv_add_u32 v12, s44, v1")
    def ofr(jj):
        for u in range(4):
            for a in range(3):
                e(f"s_mov_b32 s57, {jj*36864 + a*4096}")
                e.vm(f"buffer_load_dwordx4 {A(XF(a, 4*jj+u), 4)}, v12, {S(sOX,4)}, s57 offen offset:{u*1024}", tag=("X", 4*jj+u))
    for jj in range(3):
        wshare(e, jj); ofr(jj)
    v_addr_setup(e, vVA, 2)
    e.need_vm(("W", 0))
    e("s_barrier")
    e.need_vm(("X", 3))
    wshare(e, 3); ofr(3)
    def reads(t, ks):
        out = []
        for rho in range(2):
            out.append((f"ds_read_b64_tr_b16 {A(VF(t)+2*rho,2)}, v{vVA + 8*(ks>>3) + t} offset:{(ks&7)*8192 + rho*4096}", ("WF", t),
                        dict(ldsr=(ks*8192, 8192, ("WO", ks)))))
        return out
    def hook(ks):
        if (ks + 1) % 4 == 0:
            e.need_vm(("W", (ks + 1) // 4)); e("s_barrier")
    gemm_phase(e, 16, reads, lambda a, ks: A(XF(a, ks), 4), lambda ks: e.need_vm(("X", ks)), hook)
    e("s_nop 7")
    e(f"s_lshl_b32 s44, s{sB_}, 2\ns_add_u32 s44, s44, s{sJ_}\ns_lshl_b32 s44, s44, 3\ns_add_u32 s44, s44, s{sG_}")
    e(f"s_mul_i32 s44, s44, {72*1024}\ns_mul_i32 s45, s{sW_}, 3072\ns_add_u32 s44, s44, s45\ns_add_u32 s44, s44, {OXSIZE}")
    e("s_add_u32 s46, s18, s44\ns_addc_u32 s47, s19, 0")
    e("v_lshlrev_b32 v1, 4, v0")
    for t in range(8):
        if t: e(f"v_add_u32 v1, {9*1024}, v1")
        for a in range(3):
            e.vm(f"global_store_dwordx4 v1, {V(O(a,t),4)}, s[46:47] offset:{a*1024}", tag="st")
        e("s_nop 1")
    e("s_endpgm")
    p.block("o_w3")
    p("L_o_w3:")
    l = Em(p)
    for jj in range(3): wshare(l, jj)
    l.need_vm(("W", 0)); l("s_barrier")
    wshare(l, 3)
    for jj in range(1, 4):
        l.need_vm(("W", jj)); l("s_barrier")
    l("s_endpgm")
    p.block("o_end")
    p("L_o_end:\ns_endpgm")
    return {"ocw": ["o_entry", "o_cw"], "ow3": ["o_entry", "o_w3"]}

def gen_reduce(p):
    name = "reduce_kernel"
    p.block("r_all")
    p(f".globl {name}\n.p2align 8\n.type {name},@function\n{name}:")
    common_setup(p, "L_r_end")
    e = Em(p)
    e(f"s_lshl_b32 s44, s{sB_}, 2\ns_add_u32 s44, s44, s{sJ_}\ns_mul_i32 s44, s44, {64*9*1024}")
    e(f"s_mul_i32 s45, s{sG_}, {9*1024}\ns_add_u32 s44, s44, s45\ns_mul_i32 s45, s{sW_}, 3072\ns_add_u32 s44, s44, s45\ns_add_u32 s44, s44, {OXSIZE}")
    srd(e, 20, 18, "s44", "0", str(8 * 72 * 1024))
    e("v_lshlrev_b32 v1, 4, v0")
    for s in range(8):
        e(f"s_mov_b32 s45, {s*72*1024}")
        for a in range(3):
            e.vm(f"buffer_load_dwordx4 {V(16+(s*3+a)*4,4)}, v1, s[20:23], s45 offen offset:{a*1024}", tag=("P", s))
    e(f"s_mul_i32 s44, s{sB_}, 144\ns_mul_i32 s45, s{sW_}, 48\ns_add_u32 s44, s44, s45\ns_lshl_b32 s44, s44, 10")
    e(f"s_lshl_b32 s45, s{sJ_}, 8\ns_add_u32 s44, s44, s45\ns_lshl_b32 s45, s{sG_}, 5\ns_add_u32 s44, s44, s45")
    e("v_and_b32 v2, 15, v0\nv_lshrrev_b32 v3, 4, v0\nv_lshlrev_b32 v2, 10, v2\nv_lshl_add_u32 v2, v3, 3, v2\nv_add_u32 v2, s44, v2")
    for s in range(1, 8):
        e.need_vm(("P", s))
        for a in range(3):
            for r in range(4): e(f"v_add_f32 v{16+a*4+r}, v{16+a*4+r}, v{16+(s*3+a)*4+r}")
    for a in range(3):
        e(f"v_cvt_pk_bf16_f32 v{4+2*a}, v{16+a*4}, v{17+a*4}\nv_cvt_pk_bf16_f32 v{5+2*a}, v{18+a*4}, v{19+a*4}")
    for a in range(3):
        e.vm(f"global_store_dwordx2 v2, {V(4+2*a,2)}, s[14:15]", tag="st")
        if a < 2: e("v_add_u32 v2, 16384, v2")
    e("s_endpgm")
    p("L_r_end:\ns_endpgm")
    return {"red": ["r_all"]}
```

```python
import sys
from gen1 import *
import gen_k23
def build(path=None):
    sh = Prog(); Ts = gen_attn(sh, True)
    pr = Prog(); Tr = gen_attn(pr, False)
    for k in Ts: assert Ts[k] == Tr[k], k
    errs, ev, ep = run_checks(sh, {"cw": ["a_entry", "a_pro", "a_loop", "a_tail", "a_epi"],
                                   "ld": ["a_entry", "a_ld_pro", "a_ld_A", "a_ld_T", "a_ld_B", "a_ld_E"]})
    e2, _, _ = run_checks(sh, {"slow": ["a_entry", "a_pro", "a_loop", "a_tail", "a_epi", "a_slow", "a_epi"]})
    errs += [x for x in e2 if "slow" in x]
    print("barriers", ep)
    assert ep["cw"] == ep["ld"], ep
    errs += check_lds(ev)
    p2 = Prog(); tr2 = gen_k23.gen_oproj(p2)
    er, ev2, ep2 = run_checks(p2, tr2); print("k2 barriers", ep2); errs += er + check_lds(ev2)
    p3 = Prog(); tr3 = gen_k23.gen_reduce(p3)
    er, _, _ = run_checks(p3, tr3); errs += er
    for x in errs[:40]: print("ERR", x)
    print(len(errs), "errors")
    hdr = open("standalone__gqa_block_cached__near_ridge.s.ref").read().split("; Override")[0]
    txt = hdr
    txt += "; @launch kernel=attn_kernel grid=(256,1,1) block=(256,1,1) lds=163840\n"
    txt += "; @launch kernel=oproj_kernel grid=(256,1,1) block=(256,1,1) lds=131072\n"
    txt += "; @launch kernel=reduce_kernel grid=(256,1,1) block=(192,1,1) lds=0\n"
    txt += '.amdgcn_target "amdgcn-amd-amdhsa--gfx950"\n.text\n'
    txt += pr.text() + p2.text() + p3.text()
    txt += '.section .rodata,"a"\n.p2align 6\n' + descriptor("attn_kernel", 512, 256) + ".p2align 6\n" + descriptor("oproj_kernel", 512, 256) + ".p2align 6\n" + descriptor("reduce_kernel", 128, 128)
    if path: open(path, "w").write(txt)
    return len(errs)
if __name__ == "__main__":
    build(sys.argv[1] if len(sys.argv) > 1 else "k.s")
```
